```python
import torch

def _softmax(x, axis=-1):
    return torch.softmax(x, dim=axis)
def _gelu(x):
    return torch.nn.functional.gelu(x, approximate="tanh")
def _silu(x):
    return torch.nn.functional.silu(x)
def _sigmoid(x):
    return torch.sigmoid(x)
def _layernorm(x, axis=-1, eps=1e-5):
    m = x.mean(dim=axis, keepdim=True)
    v = x.var(dim=axis, keepdim=True, unbiased=False)
    return (x - m) / torch.sqrt(v + eps)
def _scatter_add(tgt, idx, src, axis=0):
    return tgt.clone().index_add_(axis, idx, src)
def _segment_sum(src, seg, n):
    out = torch.zeros((n,) + src.shape[1:], dtype=src.dtype)
    return out.index_add_(0, seg, src)
def _pad(x, pw):
    flat = tuple(v for pair in reversed(pw) for v in pair)
    return torch.nn.functional.pad(x, flat)

kernel_name = 'concat_heads__mha_block_cached__mha_block_cached__decode'

def setup_inputs():

    _w = (lambda a: (lambda t: t.to(torch.bfloat16) if t.is_floating_point() else t)(torch.as_tensor(a)))
    def _A_setup():
        B, Sq, D = 2, 1, 448
        H, Sk, Dh = 16, 4096, 256
        return {
            "x": _w((lambda *s: torch.randn(*s, dtype=torch.bfloat16) * 0.8)(B, Sq, D)),
            "k_cache": _w((lambda *s: torch.randn(*s, dtype=torch.bfloat16) * 0.8)(B, H, Sk, Dh)),
            "v_cache": _w((lambda *s: torch.randn(*s, dtype=torch.bfloat16) * 0.05)(B, H, Sk, Dh)),
            "wq": _w((lambda *s: torch.randn(*s, dtype=torch.bfloat16) * 0.8)(D, H * Dh) * (D ** -0.5)),
            "wo": _w((lambda *s: torch.randn(*s, dtype=torch.bfloat16) * 0.05)(H * Dh, D) * ((H * Dh) ** -0.5)),
        }
    _A_in = _A_setup()

    def _B_setup():
        B, Sq, D = 2, 1, 448
        H, Sk, Dh = 16, 4096, 256
        return {
            "x": _w((lambda *s: torch.randn(*s, dtype=torch.bfloat16) * 0.8)(B, Sq, D)),
            "k_cache": _w((lambda *s: torch.randn(*s, dtype=torch.bfloat16) * 0.8)(B, H, Sk, Dh)),
            "v_cache": _w((lambda *s: torch.randn(*s, dtype=torch.bfloat16) * 0.05)(B, H, Sk, Dh)),
            "wq": _w((lambda *s: torch.randn(*s, dtype=torch.bfloat16) * 0.8)(D, H * Dh) * (D ** -0.5)),
            "wo": _w((lambda *s: torch.randn(*s, dtype=torch.bfloat16) * 0.05)(H * Dh, D) * ((H * Dh) ** -0.5)),
        }
    _B_in = _B_setup()

    return {
        "A_x": _A_in["x"],
        "A_k_cache": _A_in["k_cache"],
        "A_v_cache": _A_in["v_cache"],
        "A_wq": _A_in["wq"],
        "A_wo": _A_in["wo"],
        "B_x": _B_in["x"],
        "B_k_cache": _B_in["k_cache"],
        "B_v_cache": _B_in["v_cache"],
        "B_wq": _B_in["wq"],
        "B_wo": _B_in["wo"],
    }

def reference(A_x, A_k_cache, A_v_cache, A_wq, A_wo, B_x, B_k_cache, B_v_cache, B_wq, B_wo):
    def _A_ref(x, k_cache, v_cache, wq, wo):
        B, Sq, D = x.shape
        H, Dh = 16, 256
        q = (lambda x, *d: x.permute(*d))((x @ wq).reshape(B, Sq, H, Dh), 0, 2, 1, 3)
        scores = torch.einsum("bhqd,bhkd->bhqk", q, k_cache) * (Dh ** -0.5)
        p = _softmax(scores, axis=-1)
        o = torch.einsum("bhqk,bhkd->bhqd", p, v_cache)
        return (lambda x, *d: x.permute(*d))(o, 0, 2, 1, 3).reshape(B, Sq, H * Dh) @ wo

    def _B_ref(x, k_cache, v_cache, wq, wo):
        B, Sq, D = x.shape
        H, Dh = 16, 256
        q = (lambda x, *d: x.permute(*d))((x @ wq).reshape(B, Sq, H, Dh), 0, 2, 1, 3)
        scores = torch.einsum("bhqd,bhkd->bhqk", q, k_cache) * (Dh ** -0.5)
        p = _softmax(scores, axis=-1)
        o = torch.einsum("bhqk,bhkd->bhqd", p, v_cache)
        return (lambda x, *d: x.permute(*d))(o, 0, 2, 1, 3).reshape(B, Sq, H * Dh) @ wo

    a = _A_ref(A_x, A_k_cache, A_v_cache, A_wq, A_wo)
    b = _B_ref(B_x, B_k_cache, B_v_cache, B_wq, B_wo)
    return torch.concatenate([a, b], axis=-1)
```

```python
import re

REG_RE = re.compile(r'^(-|\|)?(v|s|a)(\d+|\[(\d+):(\d+)\])\|?$')

def regs_of(tok):
    tok = tok.strip()
    if tok in ('vcc',):
        return {('s', 106), ('s', 107)}
    if tok == 'vcc_lo':
        return {('s', 106)}
    if tok == 'vcc_hi':
        return {('s', 107)}
    if tok == 'exec':
        return {('s', 126), ('s', 127)}
    if tok == 'exec_lo':
        return {('s', 126)}
    if tok == 'exec_hi':
        return {('s', 127)}
    if tok == 'm0':
        return {('s', 124)}
    m = REG_RE.match(tok)
    if not m:
        return set()
    f = m.group(2)
    if m.group(4) is not None:
        return {(f, i) for i in range(int(m.group(4)), int(m.group(5)) + 1)}
    return {(f, int(m.group(3)))}

TRANS = ('v_exp_f32', 'v_log_f32', 'v_rcp_f32', 'v_rsq_f32', 'v_sqrt_f32', 'v_sin_f32', 'v_cos_f32')

class Ins:
    def __init__(self, text):
        self.text = text
        body = text.split(';')[0].strip()
        parts = body.split(None, 1)
        self.op = parts[0]
        rest = parts[1] if len(parts) > 1 else ''
        ops = []
        cur = ''
        depth = 0
        for ch in rest:
            if ch == '[':
                depth += 1
            if ch == ']':
                depth -= 1
            if ch == ',' and depth == 0:
                ops.append(cur.strip())
                cur = ''
            else:
                cur += ch
        if cur.strip():
            ops.append(cur.strip())
        self.mods = ''
        if ops:
            sp = ops[-1].split(None, 1)
            ops[-1] = sp[0]
            if len(sp) > 1:
                self.mods = sp[1]
        self.ops = ops
        op = self.op
        self.w = set()
        self.r = set()
        self.srcC = set()
        self.cls = 'other'
        self.states = 1
        self.dpp = op.endswith('_dpp') or 'quad_perm' in self.mods or 'row_' in self.mods
        if op == 's_nop':
            self.states = int(ops[0], 0) + 1
            self.cls = 'nop'
        elif op.startswith('v_mfma'):
            self.cls = 'mfma'
            self.w = regs_of(ops[0])
            self.r = regs_of(ops[1]) | regs_of(ops[2]) | regs_of(ops[3])
            self.srcAB = regs_of(ops[1]) | regs_of(ops[2])
            self.srcC = regs_of(ops[3])
            self.passes = 4 if '16x16x32' in op else (8 if '32x32x16' in op else 16)
        elif op.startswith('v_'):
            self.cls = 'valu'
            base = op.replace('_e32', '').replace('_e64', '').replace('_dpp', '')
            self.base = base
            if base.startswith('v_permlane') and 'swap' in base:
                self.w = regs_of(ops[0]) | regs_of(ops[1])
                self.r = set(self.w)
                self.cls = 'permlane'
            elif base.startswith('v_cmp'):
                self.w = regs_of(ops[0])
                for o in ops[1:]:
                    self.r |= regs_of(o)
            elif base in ('v_readfirstlane_b32', 'v_readlane_b32'):
                self.w = regs_of(ops[0])
                for o in ops[1:]:
                    self.r |= regs_of(o)
                self.cls = 'readlane'
            else:
                self.w = regs_of(ops[0])
                for o in ops[1:]:
                    self.r |= regs_of(o)
                if base.startswith('v_dot2c') or base.startswith('v_fmac'):
                    self.r |= self.w
                if base in ('v_add_co_u32', 'v_addc_co_u32'):
                    self.w |= regs_of(ops[1])
                if base == 'v_cndmask_b32' and len(ops) == 3:
                    self.r |= regs_of('vcc')
            self.trans = base in TRANS
            self.dot = base.startswith('v_dot')
        elif op.startswith('ds_'):
            self.cls = 'ds'
            if op.startswith('ds_read') or op.startswith('ds_bpermute') or op.startswith('ds_swizzle'):
                self.w = regs_of(ops[0])
                for o in ops[1:]:
                    self.r |= regs_of(o)
            else:
                for o in ops:
                    self.r |= regs_of(o)
        elif op.startswith('buffer_') or op.startswith('global_'):
            self.cls = 'vmem'
            if 'load' in op and ' lds' not in (' ' + self.mods):
                self.w = regs_of(ops[0])
                for o in ops[1:]:
                    self.r |= regs_of(o)
            else:
                for o in ops:
                    self.r |= regs_of(o)
                if 'atomic' in op and 'sc0' in self.mods:
                    self.w = regs_of(ops[0])
            self.widestore = ('store' in op) and (op.endswith('x4') or op.endswith('x3'))
            self.data = regs_of(ops[0]) if 'store' in op else set()
        elif op.startswith('s_'):
            self.cls = 'salu'
            if op.startswith('s_cmp') or op.startswith('s_cbranch') or op in ('s_branch', 's_barrier', 's_waitcnt', 's_sleep', 's_endpgm', 's_setprio'):
                for o in ops:
                    self.r |= regs_of(o)
            else:
                if ops:
                    self.w = regs_of(ops[0])
                for o in ops[1:]:
                    self.r |= regs_of(o)

VALU_LIKE = ('valu', 'permlane', 'readlane')

def need(prev, cur):
    n = 0
    pv = {x for x in prev.w if x[0] in 'va'}
    ps = {x for x in prev.w if x[0] == 's'}
    if prev.cls in VALU_LIKE:
        if cur.cls == 'mfma' and (pv & cur.r):
            n = max(n, 2)
        if cur.cls in VALU_LIKE and cur.dpp and (pv & cur.r):
            n = max(n, 2)
        if cur.cls == 'permlane' and (pv & cur.r):
            n = max(n, 2)
        if cur.cls == 'readlane' and (pv & cur.r):
            n = max(n, 1)
        if getattr(prev, 'trans', False) and cur.cls in VALU_LIKE + ('mfma',) and (pv & cur.r):
            n = max(n, 1)
        if getattr(prev, 'dot', False):
            if cur.cls in VALU_LIKE + ('mfma', 'ds', 'vmem') and (pv & (cur.r | cur.w)):
                same = getattr(cur, 'base', None) == prev.base
                if same and not (pv & (regs_of(cur.ops[1]) | regs_of(cur.ops[2]))):
                    pass
                else:
                    n = max(n, 3)
        if ps:
            if cur.cls in VALU_LIKE + ('mfma',) and (ps & cur.r):
                n = max(n, 4 if cur.cls == 'readlane' else 2)
            if cur.cls == 'vmem' and (ps & cur.r):
                n = max(n, 5)
            if cur.cls == 'salu' and (ps & cur.r):
                n = max(n, 1)
    if prev.cls == 'mfma':
        P = prev.passes
        tbl_rw = {2: 5, 4: 8, 8: 12, 16: 20}[P]
        tbl_c = {2: 4, 4: 6, 8: 10, 16: 18}[P]
        tbl_war = {2: 1, 4: 3, 8: 7, 16: 15}[P]
        if cur.cls == 'mfma':
            if prev.w & cur.srcAB:
                n = max(n, tbl_rw)
            if prev.w & cur.srcC:
                if prev.w == cur.srcC and cur.passes == P:
                    pass
                else:
                    n = max(n, tbl_c)
            if (prev.w & cur.w) and not (prev.w == cur.srcC):
                n = max(n, tbl_rw)
        elif cur.cls in VALU_LIKE + ('ds', 'vmem'):
            if prev.w & (cur.r | cur.w):
                n = max(n, tbl_rw)
            if cur.cls in VALU_LIKE and (prev.srcC & cur.w):
                n = max(n, tbl_war)
    if prev.cls == 'vmem' and getattr(prev, 'widestore', False):
        if (prev.data & cur.w):
            n = max(n, 2)
    if prev.cls == 'salu' and ('s', 124) in prev.w and cur.cls == 'vmem' and ' lds' in (' ' + cur.mods):
        n = max(n, 1)
    return n


class Emitter:
    def __init__(self):
        self.lines = []
        self.hist = []
        self.vm = []
        self.lg = []
        self.ninst = 0

    def raw(self, text):
        self.lines.append(text)

    def comment(self, text):
        self.lines.append('    ; ' + text)

    def label(self, name):
        self.fence()
        self.lines.append(name + ':')

    def fence(self):
        worst = 0
        dist = 0
        for p in reversed(self.hist):
            if p.cls == 'mfma':
                worst = max(worst, {2: 5, 4: 8, 8: 12, 16: 20}[p.passes] - dist)
            elif p.cls in VALU_LIKE:
                worst = max(worst, (5 if any(x[0] == 's' for x in p.w) else 3) - dist)
            elif p.cls == 'vmem' and getattr(p, 'widestore', False):
                worst = max(worst, 2 - dist)
            dist += p.states
            if dist > 24:
                break
        self._nop(worst)
        self.hist = []

    def _nop(self, n):
        while n > 0:
            k = min(n, 16)
            ins = Ins('s_nop %d' % (k - 1))
            self.lines.append('    s_nop %d' % (k - 1))
            self.hist.append(ins)
            self.ninst += 1
            n -= k

    def __call__(self, text, tag=None, optional=False):
        ins = Ins(text)
        worst = 0
        dist = 0
        for p in reversed(self.hist):
            worst = max(worst, need(p, ins) - dist)
            dist += p.states
            if dist > 24:
                break
        self._nop(worst)
        self.lines.append('    ' + text)
        self.hist.append(ins)
        self.hist = self.hist[-40:]
        self.ninst += 1
        if ins.cls == 'vmem':
            self.vm.append((tag, optional))
            n = len(self.vm)
            assert n <= 63, "too many outstanding vmem ops: %d" % n
        elif ins.cls == 'ds':
            self.lg.append((tag, optional))
        if ins.op.startswith('s_cbranch') or ins.op == 's_branch':
            pass
        return ins

    def wait_vm(self, tag):
        idx = None
        for i, (t, o) in enumerate(self.vm):
            if t == tag:
                idx = i
        if idx is None:
            return
        n = sum(1 for (t, o) in self.vm[idx + 1:] if not o)
        self('s_waitcnt vmcnt(%d)' % n)
        self.vm = self.vm[idx + 1:]

    def wait_vm_all(self):
        self('s_waitcnt vmcnt(0)')
        self.vm = []

    def wait_lg(self, tag=None):
        if tag is None:
            self('s_waitcnt lgkmcnt(0)')
            self.lg = []
            return
        idx = None
        for i, (t, o) in enumerate(self.lg):
            if t == tag:
                idx = i
        if idx is None:
            return
        n = sum(1 for (t, o) in self.lg[idx + 1:] if not o)
        n = min(n, 15)
        self('s_waitcnt lgkmcnt(%d)' % n)
        self.lg = self.lg[idx + 1:]

    def text(self):
        return '\n'.join(self.lines) + '\n'
```

```python
import sys, os, argparse
sys.path.insert(0, os.path.dirname(os.path.abspath(__file__)))
from emit import Emitter

NAME = 'concat_heads__mha_block_cached__mha_block_cached__decode'
HERE = os.path.dirname(os.path.abspath(__file__))
HEADER = open(os.path.join(HERE, 'header.txt')).read()

FOOTER = '''.section .rodata,"a"
.p2align 6
.amdhsa_kernel %s_kernel
  .amdhsa_next_free_vgpr 256
  .amdhsa_next_free_sgpr 102
  .amdhsa_accum_offset 256
  .amdhsa_group_segment_fixed_size 0
  .amdhsa_kernarg_size 104
  .amdhsa_user_sgpr_count 2
  .amdhsa_user_sgpr_kernarg_segment_ptr 1
  .amdhsa_system_sgpr_workgroup_id_x 1
  .amdhsa_float_denorm_mode_32 3
.end_amdhsa_kernel
''' % NAME


def gen(kv_mod='nt', w_mod='', stamps=False, nslots=5, spin_bound=100000, kfirst=2):
    e = Emitter()
    vKV, vW, vR8 = 1, 2, 3
    vM = 4
    vA = [8, 12]
    vQ = 16
    vS = 32
    vD = 48
    vWB = 64
    vSB = 176
    NS = nslots
    assert vSB + 16 * NS <= 256
    OS_STRIDE = 1088
    OS_OFF = 0
    YS_STRIDE = 1856
    YS_OFF = 16 * OS_STRIDE
    Q_OFF = YS_OFF + 16 * YS_STRIDE
    ML_OFF = Q_OFF + 512
    LDS_BYTES = ML_OFF + 128
    INBOX_G = 56 * 2048
    WS_ML = 0x80000
    WS_STAMP = 0x100000
    sW = 3
    sK, sV, sWQ, sX, sWO, sWS, sDBG, sOUT = 24, 28, 32, 36, 40, 44, 48, 52
    sOFF = 56
    sMU, sM4, sM16 = 72, 74, 76
    sC, sG, sP, sCNT = 78, 79, 80, 81
    sT = 82
    sST = 90

    def q4(base):
        return 'v[%d:%d]' % (base, base + 3)
    def v2(base):
        return 'v[%d:%d]' % (base, base + 1)
    def srd(b):
        return 's[%d:%d]' % (b, b + 3)
    def sp(b):
        return 's[%d:%d]' % (b, b + 1)
    def soff(t):
        return '0' if t == 0 else 's%d' % (sOFF + t)

    stamp_names = []
    def stamp(name):
        if not stamps:
            return
        i = len(stamp_names)
        assert i < 10
        stamp_names.append(name)
        e.comment('stamp %d %s' % (i, name))
        e('s_memrealtime s[%d:%d]' % (sST, sST + 1))
        e('s_waitcnt lgkmcnt(0)')
        e.lg = []
        e('s_mov_b32 s%d, s%d' % (92 + i, sST))

    DPPM = 'row_mask:0xf bank_mask:0xf'
    def allreduce8(op, regs):
        for ctl in ('quad_perm:[1,0,3,2]', 'quad_perm:[2,3,0,1]', 'row_half_mirror'):
            for r in regs:
                e('%s_dpp v%d, v%d, v%d %s %s' % (op, r, r, r, ctl, DPPM))

    def a_prep(aset, src):
        for i in range(4):
            e('v_and_b32 v%d, v%d, v%d' % (aset + i, src, vM + i))

    e.raw(HEADER.replace('@LDS@', str(LDS_BYTES)))
    e.raw('%s_kernel:' % NAME)
    e('s_cmp_ge_u32 s2, 256')
    e('s_cbranch_scc1 L_end')
    e('s_bfe_u32 s4, s2, 0x10002')
    e('s_mul_i32 s5, s4, 40')
    e('s_add_u32 s6, s0, s5')
    e('s_addc_u32 s7, s1, 0')
    e('s_load_dwordx8 s[8:15], s[6:7], 0')
    e('s_load_dwordx2 s[16:17], s[6:7], 32')
    e('s_load_dwordx4 s[20:23], s[0:1], 80')
    e('s_load_dwordx2 s[18:19], s[0:1], 96')
    if stamps:
        for i in range(10):
            e('s_mov_b32 s%d, 0' % (92 + i))
    e('s_and_b32 s5, s2, 3')
    e('s_lshl_b32 s5, s5, 2')
    e('s_lshr_b32 s%d, s2, 6' % sT)
    e('s_or_b32 s5, s5, s%d' % sT)
    e('s_bfe_u32 s%d, s2, 0x10005' % (sT + 6))
    e('s_bfe_u32 s%d, s2, 0x20003' % (sT + 7))
    e('s_lshl_b32 s%d, s4, 1' % sG)
    e('s_or_b32 s%d, s%d, s%d' % (sG, sG, sT + 6))
    e('s_lshl_b32 s%d, s5, 2' % sP)
    e('s_or_b32 s%d, s%d, s%d' % (sP, sP, sT + 7))
    e('s_lshl_b32 s%d, s%d, 6' % (sT, sT + 6))
    e('s_or_b32 s%d, s%d, s%d' % (sT, sT, sP))
    e('s_lshl_b32 s%d, s%d, 19' % (sT, sT))
    e('s_lshl_b32 s%d, s5, 9' % (sT + 1))
    e('s_mul_i32 s%d, s5, 229376' % (sT + 2))
    e('s_mul_i32 s%d, s%d, 896' % (sT + 3, sT + 6))
    for t in range(1, 16):
        e('s_mov_b32 s%d, %d' % (sOFF + t, t * 32768))
    e('s_mov_b32 s%d, 0x00ff00ff' % sMU)
    e('s_mov_b32 s%d, 0xff00ff00' % (sMU + 1))
    e('s_mov_b32 s%d, 0x11111111' % sM4)
    e('s_mov_b32 s%d, 0x11111111' % (sM4 + 1))
    e('s_mov_b32 s%d, 0x00010001' % sM16)
    e('s_mov_b32 s%d, 0x00010001' % (sM16 + 1))
    e('s_mov_b32 s%d, 0x3db8aa3b' % sC)
    tC, tC16, tWV, tR, tRow, tX, tA, tB = (vS + i for i in range(8))
    e('v_lshrrev_b32 v%d, 3, v0' % vR8)
    e('v_and_b32 v%d, 7, v0' % tC)
    e('v_lshlrev_b32 v%d, 4, v%d' % (tC16, tC))
    e('v_lshl_add_u32 v%d, v%d, 9, v%d' % (vKV, vR8, tC16))
    e('v_lshrrev_b32 v%d, 6, v0' % tWV)
    e('v_and_b32 v%d, 7, v%d' % (tR, vR8))
    e('v_mul_u32_u24 v%d, 56, v%d' % (tRow, tWV))
    e('v_add_u32 v%d, v%d, v%d' % (tRow, tRow, tR))
    e('v_lshl_add_u32 v%d, v%d, 13, v%d' % (vW, tRow, tC16))
    e('v_lshlrev_b32 v%d, 1, v%d' % (tX, tRow))
    e('v_readfirstlane_b32 s%d, v%d' % (sW, tWV))
    e('v_and_b32 v%d, 1, v%d' % (tA, tC))
    e('v_lshlrev_b32 v%d, 4, v%d' % (tA, tA))
    e('v_mov_b32 v%d, 0xffff' % tB)
    e('v_lshlrev_b32 v%d, v%d, v%d' % (tA, tA, tB))
    e('v_lshrrev_b32 v%d, 1, v%d' % (tB, tC))
    for i in range(4):
        e('v_cmp_eq_u32 vcc, %d, v%d' % (i, tB))
        e('v_cndmask_b32 v%d, 0, v%d, vcc' % (vM + i, tA))
    e('s_waitcnt lgkmcnt(0)')
    stamp('start')

    def mk_srd(d, lo, hi, off, nbytes):
        if off is None:
            e('s_mov_b32 s%d, s%d' % (d, lo))
            e('s_and_b32 s%d, s%d, 0xffff' % (d + 1, hi))
        else:
            e('s_add_u32 s%d, s%d, s%d' % (d, lo, off))
            e('s_addc_u32 s%d, s%d, 0' % (d + 1, hi))
            e('s_and_b32 s%d, s%d, 0xffff' % (d + 1, d + 1))
        e('s_mov_b32 s%d, %d' % (d + 2, nbytes))
        e('s_mov_b32 s%d, 0x00020000' % (d + 3))
    mk_srd(sK, 10, 11, sT, 524288)
    mk_srd(sX, 8, 9, sT + 3, 896)
    mk_srd(sWS, 18, 19, None, 0x200000)
    mk_srd(sDBG, 22, 23, None, 256)
    kvm = (' ' + kv_mod) if kv_mod else ''
    wm = (' ' + w_mod) if w_mod else ''

    def slot(u):
        return vSB + 16 * (u % NS)
    def issue_rg(u, cg):
        if u >= 32:
            return
        s = sK if u < 16 else sV
        t = u % 16
        e('buffer_load_dwordx4 %s, v%d, %s, %s offen offset:%d%s' % (q4(slot(u) + 4 * cg), vKV, srd(s), soff(t), cg * 128, kvm), tag=('rg', u, cg))

    e('s_cmp_lg_u32 s%d, 7' % sW)
    e('s_cbranch_scc1 L_noclear')
    e('s_mul_i32 s%d, s%d, %d' % (sT + 4, sG, INBOX_G))
    e('s_lshl_b32 s%d, s%d, 11' % (sT + 5, sP))
    e('s_add_u32 s%d, s%d, s%d' % (sT + 4, sT + 4, sT + 5))
    e('v_and_b32 v%d, 63, v0' % tA)
    e('v_lshlrev_b32 v%d, 5, v%d' % (tA, tA))
    for i in range(4):
        e('v_mov_b32 v%d, -1' % (vD + i))
    e('s_cmp_ge_u32 s%d, 56' % sP)
    e('s_cbranch_scc1 L_noinbox')
    e('buffer_store_dwordx4 %s, v%d, %s, s%d offen sc1' % (q4(vD), tA, srd(sWS), sT + 4), optional=True)
    e('buffer_store_dwordx4 %s, v%d, %s, s%d offen offset:16 sc1' % (q4(vD), tA, srd(sWS), sT + 4), optional=True)
    e.label('L_noinbox')
    e('s_lshl_b32 s%d, s%d, 9' % (sT + 4, sG))
    e('s_lshl_b32 s%d, s%d, 3' % (sT + 5, sP))
    e('s_add_u32 s%d, s%d, s%d' % (sT + 4, sT + 4, sT + 5))
    e('s_add_u32 s%d, s%d, %d' % (sT + 4, sT + 4, WS_ML))
    e('v_mov_b32 v%d, 0' % tA)
    e('v_mov_b32 v%d, 1' % tB)
    e('s_mov_b64 exec, 1')
    e('buffer_store_dwordx2 %s, v%d, %s, s%d offen sc1' % (v2(vD), tA, srd(sWS), sT + 4), optional=True)
    e('s_waitcnt vmcnt(0)')
    e('s_lshl_b32 s%d, s%d, 6' % (sT + 4, sG))
    e('buffer_atomic_add v%d, v%d, %s, s%d offen sc1' % (tB, tA, srd(sDBG), sT + 4), optional=True)
    e('s_mov_b64 exec, -1')
    e.label('L_noclear')
    e.vm = [(None, True)]

    for t in range(7):
        e('buffer_load_ushort v%d, v%d, %s, 0 offen offset:%d' % (vQ + t, tX, srd(sX), 16 * t), tag=('x', t))
    for u in range(kfirst):
        for cg in range(4):
            issue_rg(u, cg)
    mk_srd(sWQ, 14, 15, sT + 1, 448 * 8192 - 15 * 512)
    for t in range(7):
        for cg in range(4):
            e('buffer_load_dwordx4 %s, v%d, %s, %s offen offset:%d%s' % (q4(vWB + 16 * t + 4 * cg), vW, srd(sWQ), soff(2 * t), cg * 128, wm), tag=('wq', t, cg))
    for u in range(kfirst, NS):
        for cg in range(4):
            issue_rg(u, cg)
    mk_srd(sV, 12, 13, sT, 524288)
    mk_srd(sWO, 16, 17, sT + 2, 229376)
    mk_srd(sOUT, 20, 21, None, 3584)
    e('v_mul_u32_u24 v%d, 3584, v%d' % (vW, vR8))
    e('v_add_u32 v%d, v%d, v%d' % (vW, vW, tC16))

    def calc_slot_waddr(dst, tmp, stride, base):
        e('v_lshrrev_b32 v%d, 5, v0' % dst)
        e('v_mul_u32_u24 v%d, %d, v%d' % (dst, stride, dst))
        e('v_and_b32 v%d, 7, v0' % tmp)
        e('v_lshl_add_u32 v%d, v%d, 5, v%d' % (dst, tmp, dst))
        e('v_and_b32 v%d, 16, v0' % tmp)
        e('v_add_u32 v%d, v%d, v%d' % (dst, dst, tmp))
        if base:
            e('v_add_u32 v%d, %d, v%d' % (dst, base, dst))
    def calc_os_raddr(dst, tmp):
        e('v_and_b32 v%d, 7, v0' % tmp)
        e('v_mul_u32_u24 v%d, %d, v%d' % (dst, OS_STRIDE, tmp))
        e('v_lshl_add_u32 v%d, v%d, 4, v%d' % (dst, vR8, dst))
        if OS_OFF:
            e('v_add_u32 v%d, %d, v%d' % (dst, OS_OFF, dst))

    tOSW, tOSR, tQW, tQR = vS + 8, vS + 9, vS + 10, vS + 11
    calc_slot_waddr(tOSW, tA, OS_STRIDE, OS_OFF)
    calc_os_raddr(tOSR, tA)
    e('v_lshlrev_b32 v%d, 3, v%d' % (tQW, vR8))

    for t in range(7):
        e.wait_vm(('x', t))
        e('v_lshl_or_b32 v%d, v%d, 16, v%d' % (vQ + t, vQ + t, vQ + t))
    for t in range(7):
        a = vA[t % 2]
        a_prep(a, vQ + t)
        for cg in range(4):
            e.wait_vm(('wq', t, cg))
            e('v_mfma_f32_16x16x32_bf16 %s, %s, %s, %s' % (q4(vD + 4 * cg), q4(a), q4(vWB + 16 * t + 4 * cg), '0' if t == 0 else q4(vD + 4 * cg)))
    stamp('wq_done')
    for t in range(4):
        for cg in range(7):
            e('buffer_load_dwordx4 %s, v%d, %s, 0 offen offset:%d%s' % (q4(vWB + 28 * t + 4 * cg), vW, srd(sWO), t * 896 + cg * 128, wm), tag=('wo', t, cg))
    e('s_mov_b64 exec, %s' % sp(sMU))
    for cg in range(4):
        e('ds_write_b128 v%d, %s offset:%d' % (tOSW, q4(vD + 4 * cg), cg * 256))
    e('s_mov_b64 exec, -1')
    e.wait_lg()
    e('s_barrier')
    e('ds_read_b128 %s, v%d' % (q4(vD), tOSR))
    e('ds_read_b128 %s, v%d offset:%d' % (q4(vD + 4), tOSR, 8 * OS_STRIDE))
    e.wait_lg()
    for i in range(4):
        e('v_add_f32 v%d, v%d, v%d' % (vD + i, vD + i, vD + 4 + i))
    allreduce8('v_add_f32', [vD + i for i in range(4)])
    e('v_cvt_pk_bf16_f32 v%d, v%d, v%d' % (vD + 4, vD, vD + 1))
    e('v_cvt_pk_bf16_f32 v%d, v%d, v%d' % (vD + 5, vD + 2, vD + 3))
    e('ds_write_b64 v%d, %s offset:%d' % (tQW, v2(vD + 4), Q_OFF))
    e.wait_lg()
    e('s_barrier')
    for cg in range(4):
        e('ds_read_b128 %s, v%d offset:%d' % (q4(vQ + 4 * cg), tC16, Q_OFF + cg * 128))
    e.wait_lg()
    for t in range(16):
        e('v_mov_b32 v%d, 0' % (vS + t))
    stamp('q_ready')

    for u in range(16):
        for cg in range(4):
            e.wait_vm(('rg', u, cg))
            for i in range(4):
                e('v_dot2c_f32_bf16 v%d, v%d, v%d' % (vS + u, slot(u) + 4 * cg + i, vQ + 4 * cg + i))
            issue_rg(u + NS, cg)
        if u % 4 == 3:
            allreduce8('v_add_f32', [vS + u - 3 + i for i in range(4)])
    stamp('k_done')
    for t in range(0, 16, 2):
        e('v_cvt_pk_bf16_f32 v%d, v%d, v%d' % (vQ + t // 2, vS + t, vS + t + 1))
    for t in range(0, 16, 2):
        e('v_lshlrev_b32 v%d, 16, v%d' % (vS + t, vQ + t // 2))
        e('v_and_b32 v%d, 0xffff0000, v%d' % (vS + t + 1, vQ + t // 2))
    tM, tM2, tL, tL2, tE = vQ + 8, vQ + 9, vQ + 10, vQ + 11, vQ + 12
    e('v_max3_f32 v%d, v%d, v%d, v%d' % (tM, vS, vS + 1, vS + 2))
    for t in range(3, 15, 2):
        e('v_max3_f32 v%d, v%d, v%d, v%d' % (tM, tM, vS + t, vS + t + 1))
    e('v_max_f32 v%d, v%d, v%d' % (tM, tM, vS + 15))
    def wave_reduce_r(op, r, tmp):
        e('%s_dpp v%d, v%d, v%d row_ror:8 %s' % (op, r, r, r, DPPM))
        e('v_mov_b32 v%d, v%d' % (tmp, r))
        e('v_permlane16_swap_b32 v%d, v%d' % (r, tmp))
        e('%s v%d, v%d, v%d' % (op, r, r, tmp))
        e('v_mov_b32 v%d, v%d' % (tmp, r))
        e('v_permlane32_swap_b32 v%d, v%d' % (r, tmp))
        e('%s v%d, v%d, v%d' % (op, r, r, tmp))
    wave_reduce_r('v_max_f32', tM, tM2)
    e('v_mul_f32 v%d, s%d, v%d' % (tM, sC, tM))
    for t in range(16):
        e('v_fma_f32 v%d, v%d, s%d, -v%d' % (tE, vS + t, sC, tM))
        e('v_exp_f32 v%d, v%d' % (tE, tE))
        if t == 0:
            e('v_mov_b32 v%d, v%d' % (tL, tE))
        else:
            e('v_add_f32 v%d, v%d, v%d' % (tL, tL, tE))
    wave_reduce_r('v_add_f32', tL, tL2)
    e('v_mov_b32 v%d, v%d' % (tM2, tL))
    e('v_lshrrev_b32 v%d, 6, v0' % tE)
    e('v_lshlrev_b32 v%d, 3, v%d' % (tE, tE))
    e('ds_write_b64 v%d, %s offset:%d' % (tE, v2(tM), ML_OFF))
    e('v_and_b32 v%d, 7, v0' % tE)
    e('v_lshlrev_b32 v%d, 3, v%d' % (tE, tE))
    e.wait_lg()
    e('s_barrier')
    e('ds_read_b64 %s, v%d offset:%d' % (v2(tL), tE, ML_OFF))
    e.wait_lg()
    e('v_mov_b32 v%d, v%d' % (tM, tL))
    allreduce8('v_max_f32', [tM])
    e('v_sub_f32 v%d, v%d, v%d' % (tL, tL, tM))
    e('v_exp_f32 v%d, v%d' % (tL, tL))
    e('v_mul_f32 v%d, v%d, v%d' % (tM2, tL, tL2))
    allreduce8('v_add_f32', [tM2])
    for t in range(16):
        e('v_fma_f32 v%d, v%d, s%d, -v%d' % (vS + t, vS + t, sC, tM))
    for t in range(16):
        e('v_exp_f32 v%d, v%d' % (vS + t, vS + t))
    for t in range(16):
        e('v_cvt_pk_bf16_f32 v%d, v%d, v%d' % (vS + t, vS + t, vS + t))
    e('s_cmp_lg_u32 s%d, 7' % sW)
    e('s_cbranch_scc1 L_noml')
    e('v_min_u32 v%d, -2, v%d' % (tM, tM))
    e('v_min_u32 v%d, -2, v%d' % (tM2, tM2))
    e('s_lshl_b32 s%d, s%d, 9' % (sT + 4, sG))
    e('s_lshl_b32 s%d, s%d, 3' % (sT + 5, sP))
    e('s_add_u32 s%d, s%d, s%d' % (sT + 4, sT + 4, sT + 5))
    e('s_add_u32 s%d, s%d, %d' % (sT + 4, sT + 4, WS_ML))
    e('v_mov_b32 v%d, 0' % tE)
    e('s_mov_b64 exec, 1')
    e('buffer_store_dwordx2 %s, v%d, %s, s%d offen sc1' % (v2(tM), tE, srd(sWS), sT + 4), optional=True)
    e('s_mov_b64 exec, -1')
    e.label('L_noml')
    stamp('p_ready')

    aOSW, aOSR, aYSW, aYSR, aPUB, aCNT, aTMP, vCNT = (vQ + i for i in range(8))
    calc_slot_waddr(aOSW, aTMP, OS_STRIDE, OS_OFF)
    calc_os_raddr(aOSR, aTMP)
    calc_slot_waddr(aYSW, aTMP, YS_STRIDE, YS_OFF)
    e('v_and_b32 v%d, 3, v0' % aTMP)
    e('v_mul_u32_u24 v%d, %d, v%d' % (aYSR, YS_STRIDE, aTMP))
    e('v_lshrrev_b32 v%d, 2, v0' % aTMP)
    e('v_lshl_add_u32 v%d, v%d, 4, v%d' % (aYSR, aTMP, aYSR))
    e('v_add_u32 v%d, %d, v%d' % (aYSR, YS_OFF, aYSR))
    e('v_and_b32 v%d, 4, v0' % aTMP)
    e('v_lshlrev_b32 v%d, 2, v%d' % (aTMP, aTMP))
    e('v_lshl_add_u32 v%d, v%d, 11, v%d' % (aPUB, vR8, aTMP))
    e('v_mov_b32 v%d, 0' % aCNT)
    e('s_lshl_b32 s%d, s%d, 6' % (sT + 6, sG))
    e('s_mul_i32 s%d, s%d, %d' % (sT + 4, sG, INBOX_G))
    e('s_lshl_b32 s%d, s%d, 5' % (sT + 5, sP))
    e('s_add_u32 s%d, s%d, s%d' % (sT + 7, sT + 4, sT + 5))

    for t in range(16):
        u = 16 + t
        a = vA[t % 2]
        a_prep(a, vS + t)
        for cg in range(4):
            e.wait_vm(('rg', u, cg))
            e('v_mfma_f32_16x16x32_bf16 %s, %s, %s, %s' % (q4(vD + 4 * cg), q4(a), q4(slot(u) + 4 * cg), '0' if t == 0 else q4(vD + 4 * cg)))
            issue_rg(u + NS, cg)
        if t == 8:
            e('buffer_load_dword v%d, v%d, %s, s%d offen sc1' % (vCNT, aCNT, srd(sDBG), sT + 6), tag='cnt')
    stamp('v_done')
    e('s_mov_b64 exec, %s' % sp(sMU))
    for cg in range(4):
        e('ds_write_b128 v%d, %s offset:%d' % (aOSW, q4(vD + 4 * cg), cg * 256))
    e('s_mov_b64 exec, -1')
    e.wait_lg()
    e('s_barrier')
    e('ds_read_b128 %s, v%d' % (q4(vD), aOSR))
    e('ds_read_b128 %s, v%d offset:%d' % (q4(vD + 4), aOSR, 8 * OS_STRIDE))
    e.wait_lg()
    for i in range(4):
        e('v_add_f32 v%d, v%d, v%d' % (vD + i, vD + i, vD + 4 + i))
    allreduce8('v_add_f32', [vD + i for i in range(4)])
    for i in range(4):
        e('v_cvt_pk_bf16_f32 v%d, v%d, v%d' % (vD + i, vD + i, vD + i))
    vY = vSB + 32
    e.wait_vm(('wo', 3, 6))
    for t in range(4):
        a = vA[t % 2]
        a_prep(a, vD + t)
        for cg in range(7):
            e('v_mfma_f32_16x16x32_bf16 %s, %s, %s, %s' % (q4(vY + 4 * cg), q4(a), q4(vWB + 28 * t + 4 * cg), '0' if t == 0 else q4(vY + 4 * cg)))
    e('s_mov_b64 exec, %s' % sp(sMU))
    for cg in range(7):
        e('ds_write_b128 v%d, %s offset:%d' % (aYSW, q4(vY + 4 * cg), cg * 256))
    e('s_mov_b64 exec, -1')
    e.wait_vm('cnt')
    e('s_mov_b32 s%d, 0' % sCNT)
    e.label('L_cnt')
    e('v_readfirstlane_b32 s%d, v%d' % (sT, vCNT))
    e('s_cmp_ge_u32 s%d, 64' % sT)
    e('s_cbranch_scc1 L_cnt_ok')
    e('s_add_u32 s%d, s%d, 1' % (sCNT, sCNT))
    e('s_cmp_ge_u32 s%d, %d' % (sCNT, spin_bound))
    e('s_cbranch_scc1 L_cnt_ok')
    e('s_sleep 2')
    e('buffer_load_dword v%d, v%d, %s, s%d offen sc1' % (vCNT, aCNT, srd(sDBG), sT + 6))
    e('s_waitcnt vmcnt(0)')
    e('s_branch L_cnt')
    e.label('L_cnt_ok')
    e.vm = []
    e.wait_lg()
    e('s_barrier')
    stamp('y_done')
    e('s_cmp_eq_u32 s%d, 7' % sW)
    e('s_cbranch_scc1 L_consume')
    for j in range(4):
        e('ds_read_b128 %s, v%d offset:%d' % (q4(vD + 4 * j), aYSR, 4 * j * YS_STRIDE))
    e.wait_lg()
    for i in range(4):
        e('v_add_f32 v%d, v%d, v%d' % (vD + i, vD + i, vD + 4 + i))
        e('v_add_f32 v%d, v%d, v%d' % (vD + 8 + i, vD + 8 + i, vD + 12 + i))
    for i in range(4):
        e('v_add_f32 v%d, v%d, v%d' % (vD + i, vD + i, vD + 8 + i))
    for ctl in ('quad_perm:[1,0,3,2]', 'quad_perm:[2,3,0,1]'):
        for i in range(4):
            e('v_add_f32_dpp v%d, v%d, v%d %s %s' % (vD + i, vD + i, vD + i, ctl, DPPM))
    for i in range(4):
        e('v_min_u32 v%d, -2, v%d' % (vD + i, vD + i))
    e('s_mov_b64 exec, %s' % sp(sM4))
    e('buffer_store_dwordx4 %s, v%d, %s, s%d offen sc1' % (q4(vD), aPUB, srd(sWS), sT + 7))
    e('s_mov_b64 exec, -1')
    if stamps:
        e('s_branch L_stamps')
    else:
        e('s_endpgm')
    e.label('L_consume')
    e.vm = []
    e('s_cmp_ge_u32 s%d, 56' % sP)
    e('s_cbranch_scc1 %s' % ('L_stamps' if stamps else 'L_end'))
    aIN, aML, tMX = vD + 12, vD + 13, vD + 14
    vYI, vML = vD, vD + 8
    e('v_and_b32 v%d, 63, v0' % aML)
    e('v_lshlrev_b32 v%d, 5, v%d' % (aIN, aML))
    e('v_lshlrev_b32 v%d, 3, v%d' % (aML, aML))
    e('s_mul_i32 s%d, s%d, %d' % (sT + 4, sG, INBOX_G))
    e('s_lshl_b32 s%d, s%d, 11' % (sT + 5, sP))
    e('s_add_u32 s%d, s%d, s%d' % (sT + 4, sT + 4, sT + 5))
    e('s_lshl_b32 s%d, s%d, 9' % (sT + 5, sG))
    e('s_add_u32 s%d, s%d, %d' % (sT + 5, sT + 5, WS_ML))
    e('s_mov_b32 s%d, 0' % sCNT)
    e.label('L_poll')
    e('buffer_load_dwordx4 %s, v%d, %s, s%d offen sc1' % (q4(vYI), aIN, srd(sWS), sT + 4))
    e('buffer_load_dwordx4 %s, v%d, %s, s%d offen offset:16 sc1' % (q4(vYI + 4), aIN, srd(sWS), sT + 4))
    e('buffer_load_dwordx2 %s, v%d, %s, s%d offen sc1' % (v2(vML), aML, srd(sWS), sT + 5))
    e('s_waitcnt vmcnt(0)')
    e.vm = []
    e('v_max3_u32 v%d, v%d, v%d, v%d' % (tMX, vYI, vYI + 1, vYI + 2))
    e('v_max3_u32 v%d, v%d, v%d, v%d' % (tMX, tMX, vYI + 3, vYI + 4))
    e('v_max3_u32 v%d, v%d, v%d, v%d' % (tMX, tMX, vYI + 5, vYI + 6))
    e('v_max3_u32 v%d, v%d, v%d, v%d' % (tMX, tMX, vYI + 7, vML))
    e('v_max_u32 v%d, v%d, v%d' % (tMX, tMX, vML + 1))
    e('v_cmp_eq_u32 vcc, -1, v%d' % tMX)
    e('s_nop 1')
    e('s_cmp_eq_u64 vcc, 0')
    e('s_cbranch_scc1 L_poll_ok')
    e('s_mov_b64 exec, vcc')
    e('s_add_u32 s%d, s%d, 1' % (sCNT, sCNT))
    e('s_cmp_lt_u32 s%d, %d' % (sCNT, spin_bound))
    e('s_cbranch_scc1 L_poll')
    e.label('L_poll_ok')
    e('s_mov_b64 exec, -1')
    stamp('polled')
    tQ1, tQ2 = vD + 12, vD + 13
    e('v_mov_b32 v%d, v%d' % (tQ1, vML))
    for ctl in ('quad_perm:[1,0,3,2]', 'quad_perm:[2,3,0,1]'):
        e('v_max_f32_dpp v%d, v%d, v%d %s %s' % (tQ1, tQ1, tQ1, ctl, DPPM))
    e('v_sub_f32 v%d, v%d, v%d' % (tQ1, vML, tQ1))
    e('v_exp_f32 v%d, v%d' % (tQ1, tQ1))
    e('v_mul_f32 v%d, v%d, v%d' % (tQ2, tQ1, vML + 1))
    for ctl in ('quad_perm:[1,0,3,2]', 'quad_perm:[2,3,0,1]'):
        e('v_add_f32_dpp v%d, v%d, v%d %s %s' % (tQ2, tQ2, tQ2, ctl, DPPM))
    e('v_rcp_f32 v%d, v%d' % (tQ2, tQ2))
    e('v_mul_f32 v%d, v%d, v%d' % (tQ1, tQ1, tQ2))
    for i in range(8):
        e('v_mul_f32 v%d, v%d, v%d' % (vYI + i, vYI + i, tQ1))
    for i in range(4):
        e('v_permlane32_swap_b32 v%d, v%d' % (vYI + i, vYI + 4 + i))
    for i in range(4):
        e('v_add_f32 v%d, v%d, v%d' % (vYI + i, vYI + i, vYI + 4 + i))
    for i in range(2):
        e('v_permlane16_swap_b32 v%d, v%d' % (vYI + i, vYI + 2 + i))
    for i in range(2):
        e('v_add_f32 v%d, v%d, v%d' % (vYI + i, vYI + i, vYI + 2 + i))
    for ctl in ('quad_perm:[1,0,3,2]', 'quad_perm:[2,3,0,1]', 'row_half_mirror', 'row_mirror'):
        for i in range(2):
            e('v_add_f32_dpp v%d, v%d, v%d %s %s' % (vYI + i, vYI + i, vYI + i, ctl, DPPM))
    e('v_cvt_pk_bf16_f32 v%d, v%d, v%d' % (vYI, vYI, vYI + 1))
    e('v_and_b32 v%d, 63, v0' % tQ2)
    e('v_lshrrev_b32 v%d, 4, v%d' % (tQ2, tQ2))
    e('v_lshlrev_b32 v%d, 2, v%d' % (tQ2, tQ2))
    e('s_and_b32 s%d, s%d, 1' % (sT, sG))
    e('s_mul_i32 s%d, s%d, 1792' % (sT, sT))
    e('s_lshr_b32 s%d, s%d, 1' % (sT + 1, sG))
    e('s_mul_i32 s%d, s%d, 896' % (sT + 1, sT + 1))
    e('s_add_u32 s%d, s%d, s%d' % (sT, sT, sT + 1))
    e('s_lshl_b32 s%d, s%d, 4' % (sT + 1, sP))
    e('s_add_u32 s%d, s%d, s%d' % (sT, sT, sT + 1))
    e('s_mov_b64 exec, %s' % sp(sM16))
    e('buffer_store_dword v%d, v%d, %s, s%d offen' % (vYI, tQ2, srd(sOUT), sT))
    e('s_mov_b64 exec, -1')
    if stamps:
        e.label('L_stamps')
        stamp('end')
        e('s_lshl_b32 s%d, s2, 3' % sT)
        e('s_add_u32 s%d, s%d, s%d' % (sT, sT, sW))
        e('s_lshl_b32 s%d, s%d, 6' % (sT, sT))
        e('s_add_u32 s%d, s%d, %d' % (sT, sT, WS_STAMP))
        e('s_getreg_b32 s%d, hwreg(HW_REG_XCC_ID)' % (sT + 1))
        e('s_getreg_b32 s%d, hwreg(HW_REG_HW_ID)' % (sT + 2))
        e('v_mov_b32 v1, 0')
        e('s_mov_b64 exec, 1')
        for i in range(10):
            e('v_mov_b32 v2, s%d' % (92 + i))
            e('buffer_store_dword v2, v1, %s, s%d offen offset:%d' % (srd(sWS), sT, 4 * i))
            e('s_waitcnt vmcnt(0)')
            e.vm = []
        e('v_mov_b32 v2, s%d' % (sT + 1))
        e('buffer_store_dword v2, v1, %s, s%d offen offset:%d' % (srd(sWS), sT, 40))
        e('s_waitcnt vmcnt(0)')
        e('v_mov_b32 v2, s%d' % (sT + 2))
        e('buffer_store_dword v2, v1, %s, s%d offen offset:%d' % (srd(sWS), sT, 44))
    e.label('L_end')
    e('s_endpgm')
    e.raw(FOOTER)
    return e.text(), stamp_names


if __name__ == '__main__':
    ap = argparse.ArgumentParser()
    ap.add_argument('-o', default='cdna_kernels/%s.s' % NAME)
    ap.add_argument('--kv', default='nt')
    ap.add_argument('--w', default='')
    ap.add_argument('--stamps', action='store_true')
    ap.add_argument('--nslots', type=int, default=5)
    ap.add_argument('--kfirst', type=int, default=2)
    a = ap.parse_args()
    txt, names = gen(kv_mod=a.kv, w_mod=a.w, stamps=a.stamps, nslots=a.nslots, kfirst=a.kfirst)
    open(a.o, 'w').write(txt)
    print('wrote', a.o, len(txt), 'bytes', names)
```

```python
import sys, os, argparse
sys.path.insert(0, os.path.dirname(os.path.abspath(__file__)))
from emit import Emitter

NAME = 'concat_heads__mha_block_cached__mha_block_cached__decode'
HERE = os.path.dirname(os.path.abspath(__file__))
HEADER = open(os.path.join(HERE, 'header.txt')).read()

FOOTER = '''.section .rodata,"a"
.p2align 6
.amdhsa_kernel %s_kernel
  .amdhsa_next_free_vgpr 256
  .amdhsa_next_free_sgpr 102
  .amdhsa_accum_offset 256
  .amdhsa_group_segment_fixed_size 0
  .amdhsa_kernarg_size 104
  .amdhsa_user_sgpr_count 2
  .amdhsa_user_sgpr_kernarg_segment_ptr 1
  .amdhsa_system_sgpr_workgroup_id_x 1
  .amdhsa_float_denorm_mode_32 3
.end_amdhsa_kernel
''' % NAME


def gen(kv_mod='nt', w_mod='', stamps=False, spin_bound=100000, kmix=12, wo_at=20, prio=True, pre_barrier=12):
    e = Emitter()
    vKV, vW, vR8 = 1, 2, 3
    vWO = vW
    vM = 4
    vA = [8, 12]
    vQ = 16
    vS = 32
    vD = 48
    vPOOL = 64
    NQ = 48
    OS_STRIDE = 1088
    OS_OFF = 0
    YS_STRIDE = 1856
    YS_OFF = 16 * OS_STRIDE
    Q_OFF = YS_OFF + 16 * YS_STRIDE
    ML_OFF = Q_OFF + 512
    LDS_BYTES = ML_OFF + 128
    INBOX_G = 56 * 2048
    WS_ML = 0x80000
    WS_STAMP = 0x100000
    sW = 3
    sK, sV, sWQ, sX, sWO, sWS, sDBG, sOUT = 24, 28, 32, 36, 40, 44, 48, 52
    sOFF = 56
    sMU, sM4, sM16 = 72, 74, 76
    sC, sG, sP, sCNT = 78, 79, 80, 81
    sT = 82
    sST = 90

    def q4(base):
        return 'v[%d:%d]' % (base, base + 3)
    def v2(base):
        return 'v[%d:%d]' % (base, base + 1)
    def srd(b):
        return 's[%d:%d]' % (b, b + 3)
    def sp(b):
        return 's[%d:%d]' % (b, b + 1)
    def soff(t):
        return '0' if t == 0 else 's%d' % (sOFF + t)

    stamp_names = []
    def stamp(name):
        if not stamps:
            return
        i = len(stamp_names)
        assert i < 10
        stamp_names.append(name)
        e.comment('stamp %d %s' % (i, name))
        e('s_memrealtime s[%d:%d]' % (sST, sST + 1))
        e('s_waitcnt lgkmcnt(0)')
        e.lg = []
        e('s_mov_b32 s%d, s%d' % (92 + i, sST))

    DPPM = 'row_mask:0xf bank_mask:0xf'
    def allreduce8(op, regs):
        for ctl in ('quad_perm:[1,0,3,2]', 'quad_perm:[2,3,0,1]', 'row_half_mirror'):
            for r in regs:
                e('%s_dpp v%d, v%d, v%d %s %s' % (op, r, r, r, ctl, DPPM))

    def a_prep(aset, src):
        for i in range(4):
            e('v_and_b32 v%d, v%d, v%d' % (aset + i, src, vM + i))

    e.raw(HEADER.replace('@LDS@', str(LDS_BYTES)))
    e.raw('%s_kernel:' % NAME)
    e('s_cmp_ge_u32 s2, 256')
    e('s_cbranch_scc1 L_end')
    e('s_bfe_u32 s4, s2, 0x10002')
    e('s_mul_i32 s5, s4, 40')
    e('s_add_u32 s6, s0, s5')
    e('s_addc_u32 s7, s1, 0')
    e('s_load_dwordx8 s[8:15], s[6:7], 0')
    e('s_load_dwordx2 s[16:17], s[6:7], 32')
    e('s_load_dwordx4 s[20:23], s[0:1], 80')
    e('s_load_dwordx2 s[18:19], s[0:1], 96')
    if stamps:
        for i in range(10):
            e('s_mov_b32 s%d, 0' % (92 + i))
    e('s_and_b32 s5, s2, 3')
    e('s_lshl_b32 s5, s5, 2')
    e('s_lshr_b32 s%d, s2, 6' % sT)
    e('s_or_b32 s5, s5, s%d' % sT)
    e('s_bfe_u32 s%d, s2, 0x10005' % (sT + 6))
    e('s_bfe_u32 s%d, s2, 0x20003' % (sT + 7))
    e('s_lshl_b32 s%d, s4, 1' % sG)
    e('s_or_b32 s%d, s%d, s%d' % (sG, sG, sT + 6))
    e('s_lshl_b32 s%d, s5, 2' % sP)
    e('s_or_b32 s%d, s%d, s%d' % (sP, sP, sT + 7))
    e('s_lshl_b32 s%d, s%d, 6' % (sT, sT + 6))
    e('s_or_b32 s%d, s%d, s%d' % (sT, sT, sP))
    e('s_lshl_b32 s%d, s%d, 19' % (sT, sT))
    e('s_lshl_b32 s%d, s5, 9' % (sT + 1))
    e('s_mul_i32 s%d, s5, 229376' % (sT + 2))
    e('s_mul_i32 s%d, s%d, 896' % (sT + 3, sT + 6))
    for t in range(1, 16):
        e('s_mov_b32 s%d, %d' % (sOFF + t, t * 32768))
    e('s_mov_b32 s%d, 0x00ff00ff' % sMU)
    e('s_mov_b32 s%d, 0xff00ff00' % (sMU + 1))
    e('s_mov_b32 s%d, 0x11111111' % sM4)
    e('s_mov_b32 s%d, 0x11111111' % (sM4 + 1))
    e('s_mov_b32 s%d, 0x00010001' % sM16)
    e('s_mov_b32 s%d, 0x00010001' % (sM16 + 1))
    e('s_mov_b32 s%d, 0x3db8aa3b' % sC)
    tC, tC16, tWV, tR, tRow, tX, tA, tB = (vS + i for i in range(8))
    e('v_lshrrev_b32 v%d, 3, v0' % vR8)
    e('v_and_b32 v%d, 7, v0' % tC)
    e('v_lshlrev_b32 v%d, 4, v%d' % (tC16, tC))
    e('v_lshl_add_u32 v%d, v%d, 9, v%d' % (vKV, vR8, tC16))
    e('v_lshrrev_b32 v%d, 6, v0' % tWV)
    e('v_and_b32 v%d, 7, v%d' % (tR, vR8))
    e('v_mul_u32_u24 v%d, 56, v%d' % (tRow, tWV))
    e('v_add_u32 v%d, v%d, v%d' % (tRow, tRow, tR))
    e('v_lshl_add_u32 v%d, v%d, 13, v%d' % (vW, tRow, tC16))
    e('v_lshlrev_b32 v%d, 1, v%d' % (tX, tRow))
    e('v_readfirstlane_b32 s%d, v%d' % (sW, tWV))
    e('v_and_b32 v%d, 1, v%d' % (tA, tC))
    e('v_lshlrev_b32 v%d, 4, v%d' % (tA, tA))
    e('v_mov_b32 v%d, 0xffff' % tB)
    e('v_lshlrev_b32 v%d, v%d, v%d' % (tA, tA, tB))
    e('v_lshrrev_b32 v%d, 1, v%d' % (tB, tC))
    for i in range(4):
        e('v_cmp_eq_u32 vcc, %d, v%d' % (i, tB))
        e('v_cndmask_b32 v%d, 0, v%d, vcc' % (vM + i, tA))
    e('s_waitcnt lgkmcnt(0)')
    stamp('start')

    def mk_srd(d, lo, hi, off, nbytes):
        if off is None:
            e('s_mov_b32 s%d, s%d' % (d, lo))
            e('s_and_b32 s%d, s%d, 0xffff' % (d + 1, hi))
        else:
            e('s_add_u32 s%d, s%d, s%d' % (d, lo, off))
            e('s_addc_u32 s%d, s%d, 0' % (d + 1, hi))
            e('s_and_b32 s%d, s%d, 0xffff' % (d + 1, d + 1))
        e('s_mov_b32 s%d, %d' % (d + 2, nbytes))
        e('s_mov_b32 s%d, 0x00020000' % (d + 3))
    mk_srd(sK, 10, 11, sT, 524288)
    mk_srd(sX, 8, 9, sT + 3, 896)
    mk_srd(sWS, 18, 19, None, 0x200000)
    mk_srd(sDBG, 22, 23, None, 256)
    kvm = (' ' + kv_mod) if kv_mod else ''
    wm = (' ' + w_mod) if w_mod else ''

    items = []
    kq = [('rg', u, cg) for u in range(32) for cg in range(4)]
    wqi = [('wq', t, cg) for t in range(7) for cg in range(4)]
    woi = [('wo', t, cg) for t in range(4) for cg in range(7)]
    ki = 0
    for i, w_ in enumerate(wqi):
        want = (i * kmix) // 28 + 1 if kmix else 0
        while ki < min(want, kmix):
            items.append(kq[ki]); ki += 1
        items.append(w_)
    n_first = len(items)
    wi = 0
    while ki < len(kq):
        items.append(kq[ki]); ki += 1
        if ki > 4 * wo_at and wi < len(woi):
            items.append(woi[wi]); wi += 1
    assert wi == len(woi)
    free = list(range(NQ))
    where = {}
    nxt = [0]
    def issue_one():
        it = items[nxt[0]]
        nxt[0] += 1
        qd = free.pop(0)
        where[it] = vPOOL + 4 * qd
        r = where[it]
        if it[0] == 'rg':
            u, cg = it[1], it[2]
            s_ = sK if u < 16 else sV
            e('buffer_load_dwordx4 %s, v%d, %s, %s offen offset:%d%s' % (q4(r), vKV, srd(s_), soff(u % 16), cg * 128, kvm), tag=it)
        elif it[0] == 'wq':
            t, cg = it[1], it[2]
            e('buffer_load_dwordx4 %s, v%d, %s, %s offen offset:%d%s' % (q4(r), vW, srd(sWQ), soff(2 * t), cg * 128, wm), tag=it)
        else:
            t, cg = it[1], it[2]
            e('buffer_load_dwordx4 %s, v%d, %s, 0 offen offset:%d%s' % (q4(r), vWO, srd(sWO), t * 896 + cg * 128, wm), tag=it)
    def pump(limit=None):
        while nxt[0] < len(items) and free and len(e.vm) < 62 and (limit is None or nxt[0] < limit):
            issue_one()
    def release(it):
        free.append((where[it] - vPOOL) // 4)


    def do_clear():
        cA, cB = vD + 4, vD + 5
        e('s_cmp_lg_u32 s%d, 7' % sW)
        e('s_cbranch_scc1 L_noclear')
        e('s_mul_i32 s%d, s%d, %d' % (sT + 4, sG, INBOX_G))
        e('s_lshl_b32 s%d, s%d, 11' % (sT + 5, sP))
        e('s_add_u32 s%d, s%d, s%d' % (sT + 4, sT + 4, sT + 5))
        e('v_and_b32 v%d, 63, v0' % cA)
        e('v_lshlrev_b32 v%d, 5, v%d' % (cA, cA))
        for i in range(4):
            e('v_mov_b32 v%d, -1' % (vD + i))
        e('s_cmp_ge_u32 s%d, 56' % sP)
        e('s_cbranch_scc1 L_noinbox')
        e('buffer_store_dwordx4 %s, v%d, %s, s%d offen sc1' % (q4(vD), cA, srd(sWS), sT + 4), optional=True)
        e('buffer_store_dwordx4 %s, v%d, %s, s%d offen offset:16 sc1' % (q4(vD), cA, srd(sWS), sT + 4), optional=True)
        e.label('L_noinbox')
        e('s_lshl_b32 s%d, s%d, 9' % (sT + 4, sG))
        e('s_lshl_b32 s%d, s%d, 3' % (sT + 5, sP))
        e('s_add_u32 s%d, s%d, s%d' % (sT + 4, sT + 4, sT + 5))
        e('s_add_u32 s%d, s%d, %d' % (sT + 4, sT + 4, WS_ML))
        e('v_mov_b32 v%d, 0' % cB)
        e('s_mov_b64 exec, 1')
        e('buffer_store_dwordx2 %s, v%d, %s, s%d offen sc1' % (v2(vD), cB, srd(sWS), sT + 4), optional=True)
        e('s_mov_b64 exec, -1')
        e.label('L_noclear')
    def do_count():
        cA, cB = vD + 4, vD + 5
        e('s_cmp_lg_u32 s%d, 7' % sW)
        e('s_cbranch_scc1 L_nocount')
        e('v_mov_b32 v%d, 0' % cB)
        e('v_mov_b32 v%d, 1' % cA)
        e('s_lshl_b32 s%d, s%d, 6' % (sT + 4, sG))
        e('s_mov_b64 exec, 1')
        e('buffer_atomic_add v%d, v%d, %s, s%d offen sc1' % (cA, cB, srd(sDBG), sT + 4), optional=True)
        e('s_mov_b64 exec, -1')
        e.label('L_nocount')

    mk_srd(sWQ, 14, 15, sT + 1, 448 * 8192 - 15 * 512)
    if prio:
        e('s_setprio 3')
    for t in range(7):
        e('buffer_load_ushort v%d, v%d, %s, 0 offen offset:%d' % (vQ + t, tX, srd(sX), 16 * t), tag=('x', t))
    pump(n_first)
    if prio:
        e('s_setprio 0')
    mk_srd(sV, 12, 13, sT, 524288)
    mk_srd(sWO, 16, 17, sT + 2, 229376)
    mk_srd(sOUT, 20, 21, None, 3584)
    e('v_mul_u32_u24 v%d, 3584, v%d' % (vWO, vR8))
    e('v_add_u32 v%d, v%d, v%d' % (vWO, vWO, tC16))

    def calc_slot_waddr(dst, tmp, stride, base):
        e('v_lshrrev_b32 v%d, 5, v0' % dst)
        e('v_mul_u32_u24 v%d, %d, v%d' % (dst, stride, dst))
        e('v_and_b32 v%d, 7, v0' % tmp)
        e('v_lshl_add_u32 v%d, v%d, 5, v%d' % (dst, tmp, dst))
        e('v_and_b32 v%d, 16, v0' % tmp)
        e('v_add_u32 v%d, v%d, v%d' % (dst, dst, tmp))
        if base:
            e('v_add_u32 v%d, %d, v%d' % (dst, base, dst))
    def calc_os_raddr(dst, tmp):
        e('v_and_b32 v%d, 7, v0' % tmp)
        e('v_mul_u32_u24 v%d, %d, v%d' % (dst, OS_STRIDE, tmp))
        e('v_lshl_add_u32 v%d, v%d, 4, v%d' % (dst, vR8, dst))
        if OS_OFF:
            e('v_add_u32 v%d, %d, v%d' % (dst, OS_OFF, dst))

    tOSW, tOSR, tQW, tQR = vS + 8, vS + 9, vS + 10, vS + 11
    calc_slot_waddr(tOSW, tA, OS_STRIDE, OS_OFF)
    calc_os_raddr(tOSR, tA)
    e('v_lshlrev_b32 v%d, 3, v%d' % (tQW, vR8))

    for t in range(7):
        e.wait_vm(('x', t))
        e('v_lshl_or_b32 v%d, v%d, 16, v%d' % (vQ + t, vQ + t, vQ + t))
    for t in range(7):
        a = vA[t % 2]
        a_prep(a, vQ + t)
        for cg in range(4):
            e.wait_vm(('wq', t, cg))
            e('v_mfma_f32_16x16x32_bf16 %s, %s, %s, %s' % (q4(vD + 4 * cg), q4(a), q4(where[('wq', t, cg)]), '0' if t == 0 else q4(vD + 4 * cg)))
            release(('wq', t, cg))
    stamp('wq_done')
    e('s_mov_b64 exec, %s' % sp(sMU))
    for cg in range(4):
        e('ds_write_b128 v%d, %s offset:%d' % (tOSW, q4(vD + 4 * cg), cg * 256))
    e('s_mov_b64 exec, -1')
    pump(nxt[0] + pre_barrier)
    e.wait_lg()
    e('s_barrier')
    e('ds_read_b128 %s, v%d' % (q4(vD), tOSR))
    e('ds_read_b128 %s, v%d offset:%d' % (q4(vD + 4), tOSR, 8 * OS_STRIDE))
    e.wait_lg()
    for i in range(4):
        e('v_add_f32 v%d, v%d, v%d' % (vD + i, vD + i, vD + 4 + i))
    allreduce8('v_add_f32', [vD + i for i in range(4)])
    e('v_cvt_pk_bf16_f32 v%d, v%d, v%d' % (vD + 4, vD, vD + 1))
    e('v_cvt_pk_bf16_f32 v%d, v%d, v%d' % (vD + 5, vD + 2, vD + 3))
    e('ds_write_b64 v%d, %s offset:%d' % (tQW, v2(vD + 4), Q_OFF))
    e.wait_lg()
    e('s_barrier')
    for cg in range(4):
        e('ds_read_b128 %s, v%d offset:%d' % (q4(vQ + 4 * cg), tC16, Q_OFF + cg * 128))
    e.wait_lg()
    for t in range(16):
        e('v_mov_b32 v%d, 0' % (vS + t))
    stamp('q_ready')

    do_clear()
    first_after_clear = items[nxt[0]]
    counted = False
    for u in range(16):
        for cg in range(4):
            e.wait_vm(('rg', u, cg))
            if not counted and first_after_clear in where and not any(t == first_after_clear for t, o in e.vm):
                do_count()
                counted = True
            for i in range(4):
                e('v_dot2c_f32_bf16 v%d, v%d, v%d' % (vS + u, where[('rg', u, cg)] + i, vQ + 4 * cg + i))
            release(('rg', u, cg))
            pump(nxt[0] + 2)
        if u % 4 == 3:
            allreduce8('v_add_f32', [vS + u - 3 + i for i in range(4)])
    assert counted
    stamp('k_done')
    for t in range(0, 16, 2):
        e('v_cvt_pk_bf16_f32 v%d, v%d, v%d' % (vQ + t // 2, vS + t, vS + t + 1))
    for t in range(0, 16, 2):
        e('v_lshlrev_b32 v%d, 16, v%d' % (vS + t, vQ + t // 2))
        e('v_and_b32 v%d, 0xffff0000, v%d' % (vS + t + 1, vQ + t // 2))
    tM, tM2, tL, tL2, tE = vQ + 8, vQ + 9, vQ + 10, vQ + 11, vQ + 12
    e('v_max3_f32 v%d, v%d, v%d, v%d' % (tM, vS, vS + 1, vS + 2))
    for t in range(3, 15, 2):
        e('v_max3_f32 v%d, v%d, v%d, v%d' % (tM, tM, vS + t, vS + t + 1))
    e('v_max_f32 v%d, v%d, v%d' % (tM, tM, vS + 15))
    def wave_reduce_r(op, r, tmp):
        e('%s_dpp v%d, v%d, v%d row_ror:8 %s' % (op, r, r, r, DPPM))
        e('v_mov_b32 v%d, v%d' % (tmp, r))
        e('v_permlane16_swap_b32 v%d, v%d' % (r, tmp))
        e('%s v%d, v%d, v%d' % (op, r, r, tmp))
        e('v_mov_b32 v%d, v%d' % (tmp, r))
        e('v_permlane32_swap_b32 v%d, v%d' % (r, tmp))
        e('%s v%d, v%d, v%d' % (op, r, r, tmp))
    wave_reduce_r('v_max_f32', tM, tM2)
    e('v_mul_f32 v%d, s%d, v%d' % (tM, sC, tM))
    for t in range(16):
        e('v_fma_f32 v%d, v%d, s%d, -v%d' % (tE, vS + t, sC, tM))
        e('v_exp_f32 v%d, v%d' % (tE, tE))
        if t == 0:
            e('v_mov_b32 v%d, v%d' % (tL, tE))
        else:
            e('v_add_f32 v%d, v%d, v%d' % (tL, tL, tE))
    wave_reduce_r('v_add_f32', tL, tL2)
    e('v_mov_b32 v%d, v%d' % (tM2, tL))
    e('v_lshrrev_b32 v%d, 6, v0' % tE)
    e('v_lshlrev_b32 v%d, 3, v%d' % (tE, tE))
    e('ds_write_b64 v%d, %s offset:%d' % (tE, v2(tM), ML_OFF))
    e('v_and_b32 v%d, 7, v0' % tE)
    e('v_lshlrev_b32 v%d, 3, v%d' % (tE, tE))
    e.wait_lg()
    e('s_barrier')
    e('ds_read_b64 %s, v%d offset:%d' % (v2(tL), tE, ML_OFF))
    e.wait_lg()
    e('v_mov_b32 v%d, v%d' % (tM, tL))
    allreduce8('v_max_f32', [tM])
    e('v_sub_f32 v%d, v%d, v%d' % (tL, tL, tM))
    e('v_exp_f32 v%d, v%d' % (tL, tL))
    e('v_mul_f32 v%d, v%d, v%d' % (tM2, tL, tL2))
    allreduce8('v_add_f32', [tM2])
    for t in range(16):
        e('v_fma_f32 v%d, v%d, s%d, -v%d' % (vS + t, vS + t, sC, tM))
    for t in range(16):
        e('v_exp_f32 v%d, v%d' % (vS + t, vS + t))
    for t in range(16):
        e('v_cvt_pk_bf16_f32 v%d, v%d, v%d' % (vS + t, vS + t, vS + t))
    e('s_cmp_lg_u32 s%d, 7' % sW)
    e('s_cbranch_scc1 L_noml')
    e('v_min_u32 v%d, -2, v%d' % (tM, tM))
    e('v_min_u32 v%d, -2, v%d' % (tM2, tM2))
    e('s_lshl_b32 s%d, s%d, 9' % (sT + 4, sG))
    e('s_lshl_b32 s%d, s%d, 3' % (sT + 5, sP))
    e('s_add_u32 s%d, s%d, s%d' % (sT + 4, sT + 4, sT + 5))
    e('s_add_u32 s%d, s%d, %d' % (sT + 4, sT + 4, WS_ML))
    e('v_mov_b32 v%d, 0' % tE)
    e('s_mov_b64 exec, 1')
    e('buffer_store_dwordx2 %s, v%d, %s, s%d offen sc1' % (v2(tM), tE, srd(sWS), sT + 4), optional=True)
    e('s_mov_b64 exec, -1')
    e.label('L_noml')
    stamp('p_ready')

    aOSW, aOSR, aYSW, aYSR, aPUB, aCNT, aTMP, vCNT = (vQ + i for i in range(8))
    calc_slot_waddr(aOSW, aTMP, OS_STRIDE, OS_OFF)
    calc_os_raddr(aOSR, aTMP)
    calc_slot_waddr(aYSW, aTMP, YS_STRIDE, YS_OFF)
    e('v_and_b32 v%d, 3, v0' % aTMP)
    e('v_mul_u32_u24 v%d, %d, v%d' % (aYSR, YS_STRIDE, aTMP))
    e('v_lshrrev_b32 v%d, 2, v0' % aTMP)
    e('v_lshl_add_u32 v%d, v%d, 4, v%d' % (aYSR, aTMP, aYSR))
    e('v_add_u32 v%d, %d, v%d' % (aYSR, YS_OFF, aYSR))
    e('v_and_b32 v%d, 4, v0' % aTMP)
    e('v_lshlrev_b32 v%d, 2, v%d' % (aTMP, aTMP))
    e('v_lshl_add_u32 v%d, v%d, 11, v%d' % (aPUB, vR8, aTMP))
    e('v_mov_b32 v%d, 0' % aCNT)
    e('s_lshl_b32 s%d, s%d, 6' % (sT + 6, sG))
    e('s_mul_i32 s%d, s%d, %d' % (sT + 4, sG, INBOX_G))
    e('s_lshl_b32 s%d, s%d, 5' % (sT + 5, sP))
    e('s_add_u32 s%d, s%d, s%d' % (sT + 7, sT + 4, sT + 5))

    for t in range(16):
        u = 16 + t
        a = vA[t % 2]
        a_prep(a, vS + t)
        for cg in range(4):
            e.wait_vm(('rg', u, cg))
            e('v_mfma_f32_16x16x32_bf16 %s, %s, %s, %s' % (q4(vD + 4 * cg), q4(a), q4(where[('rg', u, cg)]), '0' if t == 0 else q4(vD + 4 * cg)))
            release(('rg', u, cg))
            pump(nxt[0] + 2)
        if t == 8:
            e('buffer_load_dword v%d, v%d, %s, s%d offen sc1' % (vCNT, aCNT, srd(sDBG), sT + 6), tag='cnt')
    stamp('v_done')
    e('s_mov_b64 exec, %s' % sp(sMU))
    for cg in range(4):
        e('ds_write_b128 v%d, %s offset:%d' % (aOSW, q4(vD + 4 * cg), cg * 256))
    e('s_mov_b64 exec, -1')
    e.wait_lg()
    e('s_barrier')
    e('ds_read_b128 %s, v%d' % (q4(vD), aOSR))
    e('ds_read_b128 %s, v%d offset:%d' % (q4(vD + 4), aOSR, 8 * OS_STRIDE))
    e.wait_lg()
    for i in range(4):
        e('v_add_f32 v%d, v%d, v%d' % (vD + i, vD + i, vD + 4 + i))
    allreduce8('v_add_f32', [vD + i for i in range(4)])
    for i in range(4):
        e('v_cvt_pk_bf16_f32 v%d, v%d, v%d' % (vD + i, vD + i, vD + i))
    assert nxt[0] == len(items)
    vYq = [vPOOL + 4 * free[i] for i in range(7)]
    e.wait_vm(('wo', 3, 6))
    for t in range(4):
        a = vA[t % 2]
        a_prep(a, vD + t)
        for cg in range(7):
            e('v_mfma_f32_16x16x32_bf16 %s, %s, %s, %s' % (q4(vYq[cg]), q4(a), q4(where[('wo', t, cg)]), '0' if t == 0 else q4(vYq[cg])))
    e('s_mov_b64 exec, %s' % sp(sMU))
    for cg in range(7):
        e('ds_write_b128 v%d, %s offset:%d' % (aYSW, q4(vYq[cg]), cg * 256))
    e('s_mov_b64 exec, -1')
    e.wait_vm('cnt')
    e('s_mov_b32 s%d, 0' % sCNT)
    e.label('L_cnt')
    e('v_readfirstlane_b32 s%d, v%d' % (sT, vCNT))
    e('s_cmp_ge_u32 s%d, 64' % sT)
    e('s_cbranch_scc1 L_cnt_ok')
    e('s_add_u32 s%d, s%d, 1' % (sCNT, sCNT))
    e('s_cmp_ge_u32 s%d, %d' % (sCNT, spin_bound))
    e('s_cbranch_scc1 L_cnt_ok')
    e('s_sleep 2')
    e('buffer_load_dword v%d, v%d, %s, s%d offen sc1' % (vCNT, aCNT, srd(sDBG), sT + 6))
    e('s_waitcnt vmcnt(0)')
    e('s_branch L_cnt')
    e.label('L_cnt_ok')
    e.vm = []
    e.wait_lg()
    e('s_barrier')
    stamp('y_done')
    e('s_cmp_eq_u32 s%d, 7' % sW)
    e('s_cbranch_scc1 L_consume')
    for j in range(4):
        e('ds_read_b128 %s, v%d offset:%d' % (q4(vD + 4 * j), aYSR, 4 * j * YS_STRIDE))
    e.wait_lg()
    for i in range(4):
        e('v_add_f32 v%d, v%d, v%d' % (vD + i, vD + i, vD + 4 + i))
        e('v_add_f32 v%d, v%d, v%d' % (vD + 8 + i, vD + 8 + i, vD + 12 + i))
    for i in range(4):
        e('v_add_f32 v%d, v%d, v%d' % (vD + i, vD + i, vD + 8 + i))
    for ctl in ('quad_perm:[1,0,3,2]', 'quad_perm:[2,3,0,1]'):
        for i in range(4):
            e('v_add_f32_dpp v%d, v%d, v%d %s %s' % (vD + i, vD + i, vD + i, ctl, DPPM))
    for i in range(4):
        e('v_min_u32 v%d, -2, v%d' % (vD + i, vD + i))
    e('s_mov_b64 exec, %s' % sp(sM4))
    e('buffer_store_dwordx4 %s, v%d, %s, s%d offen sc1' % (q4(vD), aPUB, srd(sWS), sT + 7))
    e('s_mov_b64 exec, -1')
    if stamps:
        e('s_branch L_stamps')
    else:
        e('s_endpgm')
    e.label('L_consume')
    e.vm = []
    e('s_cmp_ge_u32 s%d, 56' % sP)
    e('s_cbranch_scc1 %s' % ('L_stamps' if stamps else 'L_end'))
    aIN, aML, tMX = vD + 12, vD + 13, vD + 14
    vYI, vML = vD, vD + 8
    e('v_and_b32 v%d, 63, v0' % aML)
    e('v_lshlrev_b32 v%d, 5, v%d' % (aIN, aML))
    e('v_lshlrev_b32 v%d, 3, v%d' % (aML, aML))
    e('s_mul_i32 s%d, s%d, %d' % (sT + 4, sG, INBOX_G))
    e('s_lshl_b32 s%d, s%d, 11' % (sT + 5, sP))
    e('s_add_u32 s%d, s%d, s%d' % (sT + 4, sT + 4, sT + 5))
    e('s_lshl_b32 s%d, s%d, 9' % (sT + 5, sG))
    e('s_add_u32 s%d, s%d, %d' % (sT + 5, sT + 5, WS_ML))
    e('s_mov_b32 s%d, 0' % sCNT)
    e.label('L_poll')
    e('buffer_load_dwordx4 %s, v%d, %s, s%d offen sc1' % (q4(vYI), aIN, srd(sWS), sT + 4))
    e('buffer_load_dwordx4 %s, v%d, %s, s%d offen offset:16 sc1' % (q4(vYI + 4), aIN, srd(sWS), sT + 4))
    e('buffer_load_dwordx2 %s, v%d, %s, s%d offen sc1' % (v2(vML), aML, srd(sWS), sT + 5))
    e('s_waitcnt vmcnt(0)')
    e.vm = []
    e('v_max3_u32 v%d, v%d, v%d, v%d' % (tMX, vYI, vYI + 1, vYI + 2))
    e('v_max3_u32 v%d, v%d, v%d, v%d' % (tMX, tMX, vYI + 3, vYI + 4))
    e('v_max3_u32 v%d, v%d, v%d, v%d' % (tMX, tMX, vYI + 5, vYI + 6))
    e('v_max3_u32 v%d, v%d, v%d, v%d' % (tMX, tMX, vYI + 7, vML))
    e('v_max_u32 v%d, v%d, v%d' % (tMX, tMX, vML + 1))
    e('v_cmp_eq_u32 vcc, -1, v%d' % tMX)
    e('s_nop 1')
    e('s_cmp_eq_u64 vcc, 0')
    e('s_cbranch_scc1 L_poll_ok')
    e('s_mov_b64 exec, vcc')
    e('s_add_u32 s%d, s%d, 1' % (sCNT, sCNT))
    e('s_cmp_lt_u32 s%d, %d' % (sCNT, spin_bound))
    e('s_cbranch_scc1 L_poll')
    e.label('L_poll_ok')
    e('s_mov_b64 exec, -1')
    stamp('polled')
    tQ1, tQ2 = vD + 12, vD + 13
    e('v_mov_b32 v%d, v%d' % (tQ1, vML))
    for ctl in ('quad_perm:[1,0,3,2]', 'quad_perm:[2,3,0,1]'):
        e('v_max_f32_dpp v%d, v%d, v%d %s %s' % (tQ1, tQ1, tQ1, ctl, DPPM))
    e('v_sub_f32 v%d, v%d, v%d' % (tQ1, vML, tQ1))
    e('v_exp_f32 v%d, v%d' % (tQ1, tQ1))
    e('v_mul_f32 v%d, v%d, v%d' % (tQ2, tQ1, vML + 1))
    for ctl in ('quad_perm:[1,0,3,2]', 'quad_perm:[2,3,0,1]'):
        e('v_add_f32_dpp v%d, v%d, v%d %s %s' % (tQ2, tQ2, tQ2, ctl, DPPM))
    e('v_rcp_f32 v%d, v%d' % (tQ2, tQ2))
    e('v_mul_f32 v%d, v%d, v%d' % (tQ1, tQ1, tQ2))
    for i in range(8):
        e('v_mul_f32 v%d, v%d, v%d' % (vYI + i, vYI + i, tQ1))
    for i in range(4):
        e('v_permlane32_swap_b32 v%d, v%d' % (vYI + i, vYI + 4 + i))
    for i in range(4):
        e('v_add_f32 v%d, v%d, v%d' % (vYI + i, vYI + i, vYI + 4 + i))
    for i in range(2):
        e('v_permlane16_swap_b32 v%d, v%d' % (vYI + i, vYI + 2 + i))
    for i in range(2):
        e('v_add_f32 v%d, v%d, v%d' % (vYI + i, vYI + i, vYI + 2 + i))
    for ctl in ('quad_perm:[1,0,3,2]', 'quad_perm:[2,3,0,1]', 'row_half_mirror', 'row_mirror'):
        for i in range(2):
            e('v_add_f32_dpp v%d, v%d, v%d %s %s' % (vYI + i, vYI + i, vYI + i, ctl, DPPM))
    e('v_cvt_pk_bf16_f32 v%d, v%d, v%d' % (vYI, vYI, vYI + 1))
    e('v_and_b32 v%d, 63, v0' % tQ2)
    e('v_lshrrev_b32 v%d, 4, v%d' % (tQ2, tQ2))
    e('v_lshlrev_b32 v%d, 2, v%d' % (tQ2, tQ2))
    e('s_and_b32 s%d, s%d, 1' % (sT, sG))
    e('s_mul_i32 s%d, s%d, 1792' % (sT, sT))
    e('s_lshr_b32 s%d, s%d, 1' % (sT + 1, sG))
    e('s_mul_i32 s%d, s%d, 896' % (sT + 1, sT + 1))
    e('s_add_u32 s%d, s%d, s%d' % (sT, sT, sT + 1))
    e('s_lshl_b32 s%d, s%d, 4' % (sT + 1, sP))
    e('s_add_u32 s%d, s%d, s%d' % (sT, sT, sT + 1))
    e('s_mov_b64 exec, %s' % sp(sM16))
    e('buffer_store_dword v%d, v%d, %s, s%d offen' % (vYI, tQ2, srd(sOUT), sT))
    e('s_mov_b64 exec, -1')
    if stamps:
        e.label('L_stamps')
        stamp('end')
        e('s_lshl_b32 s%d, s2, 3' % sT)
        e('s_add_u32 s%d, s%d, s%d' % (sT, sT, sW))
        e('s_lshl_b32 s%d, s%d, 6' % (sT, sT))
        e('s_add_u32 s%d, s%d, %d' % (sT, sT, WS_STAMP))
        e('s_getreg_b32 s%d, hwreg(HW_REG_XCC_ID)' % (sT + 1))
        e('s_getreg_b32 s%d, hwreg(HW_REG_HW_ID)' % (sT + 2))
        e('v_mov_b32 v1, 0')
        e('s_mov_b64 exec, 1')
        for i in range(10):
            e('v_mov_b32 v2, s%d' % (92 + i))
            e('buffer_store_dword v2, v1, %s, s%d offen offset:%d' % (srd(sWS), sT, 4 * i))
            e('s_waitcnt vmcnt(0)')
            e.vm = []
        e('v_mov_b32 v2, s%d' % (sT + 1))
        e('buffer_store_dword v2, v1, %s, s%d offen offset:%d' % (srd(sWS), sT, 40))
        e('s_waitcnt vmcnt(0)')
        e('v_mov_b32 v2, s%d' % (sT + 2))
        e('buffer_store_dword v2, v1, %s, s%d offen offset:%d' % (srd(sWS), sT, 44))
    e.label('L_end')
    e('s_endpgm')
    e.raw(FOOTER)
    return e.text(), stamp_names


if __name__ == '__main__':
    ap = argparse.ArgumentParser()
    ap.add_argument('-o', default='cdna_kernels/%s.s' % NAME)
    ap.add_argument('--kv', default='nt')
    ap.add_argument('--w', default='')
    ap.add_argument('--stamps', action='store_true')
    ap.add_argument('--kmix', type=int, default=12)
    ap.add_argument('--wo_at', type=int, default=20)
    ap.add_argument('--pre', type=int, default=12)
    ap.add_argument('--noprio', action='store_true')
    a = ap.parse_args()
    txt, names = gen(kv_mod=a.kv, w_mod=a.w, stamps=a.stamps, kmix=a.kmix, wo_at=a.wo_at, prio=not a.noprio, pre_barrier=a.pre)
    open(a.o, 'w').write(txt)
    print('wrote', a.o, len(txt), 'bytes', names)
```
